```python
import torch

def _softmax(x, axis=-1):
    return torch.softmax(x, dim=axis)
def _gelu(x):
    return torch.nn.functional.gelu(x, approximate="tanh")
def _silu(x):
    return torch.nn.functional.silu(x)
def _sigmoid(x):
    return torch.sigmoid(x)
def _layernorm(x, axis=-1, eps=1e-5):
    m = x.mean(dim=axis, keepdim=True)
    v = x.var(dim=axis, keepdim=True, unbiased=False)
    return (x - m) / torch.sqrt(v + eps)
def _scatter_add(tgt, idx, src, axis=0):
    return tgt.clone().index_add_(axis, idx, src)
def _segment_sum(src, seg, n):
    out = torch.zeros((n,) + src.shape[1:], dtype=src.dtype)
    return out.index_add_(0, seg, src)
def _pad(x, pw):
    flat = tuple(v for pair in reversed(pw) for v in pair)
    return torch.nn.functional.pad(x, flat)

kernel_name = 'recurrent_scan__gqa_block_cached__dense_activation_gelu__prompt'

def setup_inputs():

    _w = (lambda a: (lambda t: t.to(torch.bfloat16) if t.is_floating_point() else t)(torch.as_tensor(a)))
    def _A_setup():
        B, Sq, D = 1, 2048, 512
        Hq, Hkv, Sk, Dh = 32, 32, 2048, 128
        assert Hq % Hkv == 0, (Hq, Hkv)
        return {
            "x": _w((lambda *s: torch.randn(*s, dtype=torch.bfloat16) * 0.05)(B, Sq, D)),
            "k_cache": _w((lambda *s: torch.randn(*s, dtype=torch.bfloat16) * 3.2)(B, Hkv, Sk, Dh)),
            "v_cache": _w((lambda *s: torch.randn(*s, dtype=torch.bfloat16) * 3.2)(B, Hkv, Sk, Dh)),
            "wq": _w((lambda *s: torch.randn(*s, dtype=torch.bfloat16) * 3.2)(D, Hq * Dh) * (D ** -0.5)),
            "wo": _w((lambda *s: torch.randn(*s, dtype=torch.bfloat16) * 3.2)(Hq * Dh, D) * ((Hq * Dh) ** -0.5)),
        }
    _A_in = _A_setup()

    def _B_setup():
        B, S, D, F = 1, 2048, 512, 1376
        return {
            "x": _w((lambda *s: torch.randn(*s, dtype=torch.bfloat16) * 0.05)(B, S, D)),
            "w1": _w((lambda *s: torch.randn(*s, dtype=torch.bfloat16) * 3.2)(D, F) * (D ** -0.5)),
            "b1": _w((lambda *s: torch.randn(*s, dtype=torch.bfloat16) * 3.2)(F) * 0.01),
            "w2": _w((lambda *s: torch.randn(*s, dtype=torch.bfloat16) * 0.8)(F, D) * (F ** -0.5)),
            "b2": _w((lambda *s: torch.randn(*s, dtype=torch.bfloat16) * 0.8)(D) * 0.01),
        }
    _B_in = _B_setup()

    return {
        "A_x": _A_in["x"],
        "A_k_cache": _A_in["k_cache"],
        "A_v_cache": _A_in["v_cache"],
        "A_wq": _A_in["wq"],
        "A_wo": _A_in["wo"],
        "B_x": _B_in["x"],
        "B_w1": _B_in["w1"],
        "B_b1": _B_in["b1"],
        "B_w2": _B_in["w2"],
        "B_b2": _B_in["b2"],
    }

def reference(A_x, A_k_cache, A_v_cache, A_wq, A_wo, B_x, B_w1, B_b1, B_w2, B_b2):
    def _A_ref(x, k_cache, v_cache, wq, wo):
        B, Sq, D = x.shape
        Hq, Dh = 32, 128
        Hkv = k_cache.shape[1]
        rep = Hq // Hkv
        q = (lambda x, *d: x.permute(*d))((x @ wq).reshape(B, Sq, Hq, Dh), 0, 2, 1, 3)
        k = (lambda x, n, axis: torch.repeat_interleave(x, n, dim=axis))(k_cache, rep, axis=1)
        v = (lambda x, n, axis: torch.repeat_interleave(x, n, dim=axis))(v_cache, rep, axis=1)
        scores = torch.einsum("bhqd,bhkd->bhqk", q, k) * (Dh ** -0.5)
        p = _softmax(scores, axis=-1)
        o = torch.einsum("bhqk,bhkd->bhqd", p, v)
        return (lambda x, *d: x.permute(*d))(o, 0, 2, 1, 3).reshape(B, Sq, Hq * Dh) @ wo

    def _B_ref(x, w1, b1, w2, b2):
        h = torch.einsum("bsd,df->bsf", x, w1) + b1
        h = _gelu(h)
        return torch.einsum("bsf,fd->bsd", h, w2) + b2

    x = A_x
    xn = _layernorm(x, axis=-1)
    s = _A_ref(xn, A_k_cache, A_v_cache, A_wq, A_wo)
    g = _silu(_B_ref(xn, B_w1, B_b1, B_w2, B_b2))
    return x + s * g
```

```python
import re

TRANS = ("v_exp_f32", "v_log_f32", "v_rcp_f32", "v_rsq_f32", "v_sqrt_f32", "v_sin_f32", "v_cos_f32")


def regs_of(tok):
    tok = tok.strip()
    neg = tok.startswith("-")
    if neg:
        tok = tok[1:]
    if tok.startswith("abs(") and tok.endswith(")"):
        tok = tok[4:-1]
    if tok.startswith("|") and tok.endswith("|"):
        tok = tok[1:-1]
    m = re.fullmatch(r"([vas])\[(\d+):(\d+)\]", tok)
    if m:
        return [(m.group(1), i) for i in range(int(m.group(2)), int(m.group(3)) + 1)]
    m = re.fullmatch(r"([vas])(\d+)", tok)
    if m:
        return [(m.group(1), int(m.group(2)))]
    if tok in ("vcc", "vcc_lo", "vcc_hi"):
        return [("vcc", 0)]
    if tok in ("exec", "exec_lo", "exec_hi"):
        return [("exec", 0)]
    if tok == "m0":
        return [("m0", 0)]
    return []


class Ins:
    def __init__(self, text):
        self.text = text
        t = text.split(";")[0].strip()
        self.label = t.endswith(":")
        self.directive = t.startswith(".")
        self.rd = set(); self.wr = set()
        self.kind = "none"
        self.op = ""
        self.srcC = []; self.srcAB = []; self.passes = 0
        self.states = 0
        if not t or self.label or self.directive:
            return
        parts = t.split(None, 1)
        op = parts[0]; self.op = op
        rest = parts[1] if len(parts) > 1 else ""
        ops = []; cur = ""; depth = 0
        for ch in rest:
            if ch == "[": depth += 1
            if ch == "]": depth -= 1
            if ch == "," and depth == 0:
                ops.append(cur.strip()); cur = ""
            else:
                cur += ch
        if cur.strip(): ops.append(cur.strip())
        mods = ""
        if ops:
            last = ops[-1].split(None, 1)
            ops[-1] = last[0]
            mods = last[1] if len(last) > 1 else ""
        self.ops = ops; self.mods = mods
        self.states = 1
        R = [regs_of(o) for o in ops]
        base = re.sub(r"_(e32|e64|dpp|sdwa)$", "", op)
        self.base = base
        if op.startswith("v_mfma") or op.startswith("v_smfmac"):
            self.kind = "mfma"
            self.wr = set(R[0])
            if op.startswith("v_smfmac"):
                self.srcAB = R[1] + R[2] + R[3]; self.srcC = R[0]; self.passes = 8
                self.shape = "smf"
            else:
                self.srcAB = R[1] + R[2]; self.srcC = R[3]
                if "16x16x32" in op: self.passes = 4
                elif "32x32x16" in op: self.passes = 8
                elif "16x16x4_f32" in op: self.passes = 8
                else: raise Exception("unknown mfma " + op)
                self.shape = op
            self.rd = set(self.srcAB) | set(self.srcC)
        elif op.startswith("v_"):
            self.kind = "trans" if base in TRANS else "valu"
            if base.startswith("v_cmp"):
                self.wr = set(R[0]); self.rd = set(sum(R[1:], []))
            elif base.startswith("v_permlane") and "swap" in base:
                self.wr = set(R[0] + R[1]); self.rd = set(R[0] + R[1])
            elif base in ("v_add_co_u32", "v_sub_co_u32", "v_addc_co_u32"):
                self.wr = set(R[0] + R[1]); self.rd = set(sum(R[2:], []))
            elif base == "v_nop":
                pass
            else:
                self.wr = set(R[0]); self.rd = set(sum(R[1:], []))
                if base.startswith("v_fmac") or base.startswith("v_dot2c") or base == "v_writelane_b32" or "dpp" in op:
                    self.rd |= set(R[0])
                if base == "v_cndmask_b32" and len(ops) == 3:
                    self.rd.add(("vcc", 0))
        elif op.startswith("ds_"):
            self.kind = "ds"
            if op.startswith("ds_read") or op.startswith("ds_bpermute") or op.startswith("ds_permute") or op.startswith("ds_swizzle") or "_rtn" in op:
                self.wr = set(R[0]); self.rd = set(sum(R[1:], []))
            else:
                self.rd = set(sum(R, []))
        elif op.startswith("buffer_") or op.startswith("global_"):
            self.kind = "vmem"
            islds = "lds" in mods.split() or "_lds_" in op
            self.islds = islds
            if op in ("buffer_wbl2", "buffer_inv"):
                pass
            elif islds:
                self.rd = set(sum(R, [])) | {("m0", 0)}
            elif "_load" in op:
                self.wr = set(R[0]); self.rd = set(sum(R[1:], []))
            elif "_atomic" in op and "sc0" in mods.split():
                self.wr = set(R[0]); self.rd = set(sum(R, []))
            else:
                self.rd = set(sum(R, []))
                if op.startswith("buffer_"): self.sdata = R[0]
                else: self.sdata = R[1]
        elif op.startswith("s_load") or op.startswith("s_buffer_load") or op in ("s_memtime", "s_memrealtime"):
            self.kind = "smem"
            self.wr = set(R[0]); self.rd = set(sum(R[1:], []))
        elif op == "s_waitcnt":
            self.kind = "wait"
            full = rest
            m = re.search(r"vmcnt\((\d+)\)", full); self.vm = int(m.group(1)) if m else None
            m = re.search(r"lgkmcnt\((\d+)\)", full); self.lgkm = int(m.group(1)) if m else None
        elif op == "s_nop":
            self.kind = "nop"; self.states = int(ops[0], 0) + 1
        elif op in ("s_barrier", "s_endpgm", "s_setprio", "s_sleep") or op.startswith("s_cbranch") or op == "s_branch":
            self.kind = "ctrl"
            if "vcc" in op: self.rd = {("vcc", 0)}
        elif op.startswith("s_"):
            self.kind = "salu"
            if op.startswith("s_cmp") or op.startswith("s_bitcmp"):
                self.rd = set(sum(R, []))
            else:
                self.wr = set(R[0]); self.rd = set(sum(R[1:], []))
                if "saveexec" in op:
                    self.wr.add(("exec", 0))
                if op in ("s_addk_i32", "s_mulk_i32"):
                    self.rd |= set(R[0])
        else:
            raise Exception("unknown op: " + text)


def lookback(ins, n):
    x = ins[n]
    touched = x.rd | x.wr
    isv = lambda r: r[0] in ("v", "a")
    res = []
    dist = 0
    for k in range(n - 1, max(-1, n - 24), -1):
        p = ins[k]
        need = 0
        pv = p.kind in ("valu", "trans")
        if pv:
            wv = {r for r in p.wr if isv(r)}
            ws = {r for r in p.wr if r[0] in ("s", "vcc")}
            if x.kind == "mfma" and wv & x.rd: need = max(need, 2)
            if x.kind in ("valu", "trans"):
                if p.kind == "trans" and x.kind == "valu" and wv & x.rd: need = max(need, 1)
                if x.base.startswith("v_permlane") and wv & x.rd: need = max(need, 2)
                if "dpp" in x.op and wv & x.rd: need = max(need, 2)
                if x.base in ("v_readlane_b32", "v_readfirstlane_b32") and wv & x.rd: need = max(need, 1)
                if ws & x.rd:
                    need = max(need, 4 if x.base in ("v_readlane_b32", "v_writelane_b32") else 2)
            if x.kind == "vmem" and ws & x.rd: need = max(need, 5)
            if x.kind in ("salu", "smem", "ctrl") and ws & x.rd: need = max(need, 1)
        if p.kind == "salu" and ("m0", 0) in p.wr and ("m0", 0) in x.rd: need = max(need, 1)
        if p.kind == "mfma":
            P = p.passes
            sg = "f32" == p.op.split("_")[-1]
            big = {4: 8, 8: 12}[P] if not sg else {4: 6, 8: 10}[P]
            if x.kind == "mfma":
                if p.wr & set(x.srcAB): need = max(need, big)
                if p.wr & set(x.srcC):
                    if set(x.srcC) == p.wr and x.shape == p.shape: pass
                    else: need = max(need, {4: 6, 8: 10}[P])
                elif p.wr & x.wr and x.shape != p.shape:
                    need = max(need, big)
            elif x.kind in ("valu", "trans", "ds", "vmem"):
                if p.wr & touched: need = max(need, big)
                if x.kind in ("valu", "trans") and set(p.srcC) & x.wr: need = max(need, {4: 3, 8: 7}[P])
        if p.kind == "vmem" and hasattr(p, "sdata") and len(p.sdata) >= 3 and set(p.sdata) & x.wr:
            need = max(need, 2)
        if need > dist:
            res.append((p, need, dist))
        dist += p.states
        if dist >= 20: break
    return res


def fix_hazards(asm, prefix=()):
    out = [i for i in prefix if i.kind != "none"][-30:]
    res = []
    for x in asm.ins:
        if x.kind == "none":
            res.append(x); continue
        out.append(x)
        h = lookback(out, len(out) - 1) if x.kind != "wait" else []
        if h:
            k = max(need - dist for _, need, dist in h)
            nop = Ins(f"s_nop {k - 1}")
            out.insert(len(out) - 1, nop); res.append(nop)
        res.append(x)
    asm.ins = res
    return asm


def check_trace(trace, name=""):
    errs = []
    ins = [i for i in trace if i.kind != "none"]
    lg = []
    vm = []
    isv = lambda r: r[0] in ("v", "a")
    for n, x in enumerate(ins):
        touched = x.rd | x.wr
        if x.kind == "wait":
            if x.lgkm is not None:
                if any(o.kind == "smem" for o in lg):
                    if x.lgkm == 0: lg = []
                else:
                    lg = lg[len(lg) - x.lgkm:] if x.lgkm > 0 else []
                    if x.lgkm > 15: errs.append(f"{name}#{n} lgkmcnt>15")
            if x.vm is not None:
                vm = vm[max(0, len(vm) - x.vm):] if x.vm > 0 else []
            continue
        for o in lg:
            if o.wr & touched:
                errs.append(f"{name}#{n} [{x.text.strip()}] touches pending LDS/SMEM result of [{o.text.strip()}]")
        for o in vm:
            if o.wr & touched:
                errs.append(f"{name}#{n} [{x.text.strip()}] touches pending VMEM result of [{o.text.strip()}]")
        if x.kind in ("ds", "smem"): lg.append(x)
        if x.kind == "vmem":
            vm.append(x)
            if len(vm) > 63: errs.append(f"{name}#{n} vmcnt overflow (>63 outstanding)")
        for p, need, dist in lookback(ins, n):
            errs.append(f"{name}#{n} hazard: [{p.text.strip()}] -> [{x.text.strip()}] needs {need} states, has {dist}")
    return errs


class Asm:
    def __init__(self):
        self.ins = []

    def __call__(self, text):
        for line in text.split("\n"):
            if line.strip():
                self.ins.append(Ins(line.strip()))

    def extend(self, other):
        self.ins.extend(other.ins if isinstance(other, Asm) else other)

    def text(self):
        out = []
        for i in self.ins:
            out.append(i.text if (i.label or i.directive) else "    " + i.text)
        return "\n".join(out) + "\n"


def vr(b, n=1, t="v"):
    return f"{t}{b}" if n == 1 else f"{t}[{b}:{b+n-1}]"


def ar(b, n=1):
    return vr(b, n, "a")


def sr(b, n=1):
    return vr(b, n, "s")
```

```python
import struct
from asmlib import *
KN = "recurrent_scan__gqa_block_cached__dense_activation_gelu__prompt"
def f32hex(x): return hex(struct.unpack('<I', struct.pack('<f', x))[0])
WS_O = 0
WS_O_BYTES = 16 << 20
WS_H = 16 << 20
WS_H_BYTES = 43 * 128 * 1024
WS_ST = 64 << 20

class Sched:
    def __init__(self, mf):
        self.mf = mf
        self.n = len(mf)
        self.g = [[] for _ in mf]
        self.cap = [1 if (m is not None and "smfmac" in m) else 2 for m in mf]
        self.mem = [False] * self.n
    def free(self, n, cost=1, mem=False):
        if n >= self.n: return False
        if mem and (self.mem[n] or any(not self._scalar(o) for o in self.g[n])): return False
        return self.cap[n] >= cost
    @staticmethod
    def _scalar(o):
        if isinstance(o, tuple): return o[0] in ("wl", "wv")
        return o.startswith("s_")
    def put(self, n, op, cost=1, mem=False, force=False):
        if not force: assert self.free(n, cost, mem), (n, op, self.g[n])
        self.cap[n] -= cost
        if mem: self.mem[n] = True
        self.g[n].append(op)
        return n
    def put_from(self, n0, op, cost=1, mem=False, latest=None):
        n = n0
        while not self.free(n, cost, mem):
            n += 1
            assert n < self.n and (latest is None or n <= latest), ("no slot", n0, op)
        return self.put(n, op, cost, mem)
    def seq(self):
        out = []
        for m, g in zip(self.mf, self.g):
            if m is not None: out.append(m)
            out += g
        return out

class Emitter:
    def __init__(self, a):
        self.a = a; self.lg = []; self.vm = []
    def emit(self, seq):
        for op in seq:
            if isinstance(op, tuple):
                if op[0] == "rd": self.lg.append(op[1]); self.a(op[2])
                elif op[0] == "vm": self.vm.append(op[1]); self.a(op[2])
                elif op[0] == "wl":
                    last = max(i for i, x in enumerate(self.lg) if x == op[1])
                    self.a(f"s_waitcnt lgkmcnt({min(15, len(self.lg) - 1 - last)})")
                elif op[0] == "wv":
                    last = max(i for i, x in enumerate(self.vm) if x == op[1])
                    self.a(f"s_waitcnt vmcnt({min(63, len(self.vm) - 1 - last)})")
            else:
                assert not op.startswith("ds_") and not op.startswith("buffer_"), op
                self.a(op)

def srd(a, d, base_lo, base_hi, nbytes, off=None):
    if off is None:
        a(f"s_mov_b32 s{d}, s{base_lo}\ns_mov_b32 s{d+1}, s{base_hi}")
    else:
        a(f"s_add_u32 s{d}, s{base_lo}, {off}\ns_addc_u32 s{d+1}, s{base_hi}, 0")
    a(f"s_mov_b32 s{d+2}, {nbytes}\ns_mov_b32 s{d+3}, 0x20000")

def descriptor(name, vgpr=512, acc=256, sgpr=102):
    return f""".amdhsa_kernel {name}
  .amdhsa_next_free_vgpr {vgpr}
  .amdhsa_next_free_sgpr {sgpr}
  .amdhsa_accum_offset {acc}
  .amdhsa_group_segment_fixed_size 0
  .amdhsa_kernarg_size 104
  .amdhsa_user_sgpr_count 2
  .amdhsa_user_sgpr_kernarg_segment_ptr 1
  .amdhsa_system_sgpr_workgroup_id_x 1
  .amdhsa_float_denorm_mode_32 3
.end_amdhsa_kernel
"""
```

```python
from common import *

aO = 0; aK = 192; aV = 224
aXF = 128; aWF = 192; aGR = 224; aSX = 240
vKA = 2; vVA = 6; vKD = 14; vVD = 18; vIDX = 20; vONE = 24
vNM = 32; vL = 48; vS = 64; vP = 128; vQ = 192
vL16 = 1
vXA = 32; vW1A = 34; vXD = 37; vQD = 41; vW1D = 45
vB1 = 48
vH = 128; vCS = 176
sK = 8; sV = 12; sWO = 16; sX = 20; sWQ = 24; sW1 = 28; sB1 = 32; sWH = 36
sT = 40; sW = 41; sCNT = 42; sHD = 43; sQB = 44; sWV = 45; sFB = 46; sW4 = 47; sW2 = 68; sW3 = 69; sT0 = 70
sH = 72
sO = 76
sM1 = 62; sM2 = 64; sM3 = 66
sSO = 80
KBASE = 0; VBASE = 65536; W1BASE = 131072; CSBASE = 155648; FLBASE = CSBASE + 2048
LDS_BYTES = 163840
QSCALE = (128 ** -0.5) * 1.4426950408889634

class Cfg:
    exp0 = 9
    smf_after = (69, 85, 101, 123)
    dmaK_gaps = (8, 10, 12, 24)
    dmaV_gaps = (28, 40, 42, 44)
    m0K_gap = 6; m0V_gap = 26; bar_gap = 122
    vlead = 14
    delta = 100.0
    stamps = False
    warm = True
    force_fb = False
    dmaf = ""

def O(db, qb): return ar(aO + (db * 4 + qb) * 4, 4)
def Q(qb, ds): return vr(vQ + (ds * 4 + qb) * 4, 4)
def KF(kb, ds): return ar(aK + ((kb & 1) * 4 + ds) * 4, 4)
def VF(db, ks): return ar(aV + ((db & 3) * 2 + ks) * 4, 4)
def VFh(db, ks, e): return ar(aV + ((db & 3) * 2 + ks) * 4 + 2 * e, 2)
def S(n): return vr(vS + n * 4, 4)
def P(par, qb, ks): return vr(vP + par * 32 + (qb * 2 + ks) * 4, 4)
def NM(qb): return vr(vNM + qb * 4, 4)
MF = "v_mfma_f32_16x16x32_bf16"
SMF = "v_smfmac_f32_16x16x64_bf16"

def kread(slot, kb, ds): return f"ds_read_b128 {KF(kb, ds)}, v{vKA + ds} offset:{slot * 16384 + kb * 4096}"
def vread(slot, db, ks, e): return f"ds_read_b64_tr_b16 {VFh(db, ks, e)}, v{vVA + db} offset:{slot * 16384 + ks * 8192 + e * 4096}"
def qk_mfma(n, czero=False):
    kb = n >> 4; qb = (n >> 2) & 3; ds = n & 3; t = kb * 4 + qb
    c = (NM(qb) if not czero else "0") if ds == 0 else S(t)
    if qb & 1: ds = 3 - ds
    return f"{MF} {S(t)}, {KF(kb, ds)}, {Q(qb, ds)}, {c}"
def pv_mfma(m, par):
    db = m >> 3; qb = (m >> 1) & 3; ks = m & 1
    if qb & 1: ks = 1 - ks
    if db & 1: qb = 3 - qb
    return f"{MF} {O(db, qb)}, {VF(db, ks)}, {P(par, qb, ks)}, {O(db, qb)}"
def smf(par, qb): return f"{SMF} {vr(vL + qb * 4, 4)}, {vr(vONE, 4)}, {vr(vP + par * 32 + qb * 8, 8)}, v{vIDX}"
def expi(k): return f"v_exp_f32 v{vS + k}, v{vS + k}"
def cvt(j, par):
    n = j >> 1; hf = j & 1; kb = n >> 2; qb = n & 3
    d = vP + par * 32 + (qb * 2 + (kb >> 1)) * 4 + 2 * (kb & 1) + hf
    return f"v_cvt_pk_bf16_f32 v{d}, v{vS + n * 4 + 2 * hf}, v{vS + n * 4 + 2 * hf + 1}"
def dmaK(j, cfg, so=sT): return f"buffer_load_dwordx4 v{vKD + j}, {sr(sK, 4)}, s{so} offen offset:{j * 1024}{cfg.dmaf} lds"
def dmaV(j, cfg, so=sT): return f"buffer_load_dwordx4 v{vVD + (j & 1)}, {sr(sV, 4)}, s{so} offen offset:{j * 1024}{cfg.dmaf} lds"

def build_iter(u, cfg, qk=True, pv=True, prev=True, knext=True, dma=True, bar=True, tail_ops=()):
    ks_slot = u; vs_slot = (u - 1) & 3; parn = u & 1; parc = parn ^ 1
    gaps = {n: [] for n in range(128)}
    sgap = {n: [] for n in cfg.smf_after}
    cap = {n: (2 if n % 2 == 0 else 0) for n in range(128)}
    scap = {n: 1 for n in cfg.smf_after}
    def put(n, op, on, cost=1):
        assert cap[n] >= cost, (n, op, gaps[n])
        cap[n] -= cost
        if on: gaps[n].append(op)
    def put_from(n0, op, on, latest=127):
        n = n0
        while True:
            assert n <= latest, (n0, op)
            if cap[n] >= 1:
                put(n, op, on); return n
            if n in scap and scap[n] >= 1:
                scap[n] -= 1
                if on: sgap[n].append(op)
                return n
            n += 1
    for k in range(64):
        g = cfg.exp0 + 2 * k
        if g < 128:
            if qk: gaps[g].append(expi(k))
        elif prev: gaps[g - 128].append(expi(k))
    for kb in (1, 2, 3):
        for ds in range(4):
            put(16 * (kb - 1) + 2 * ds, ("rd", f"K{kb}", kread(ks_slot, kb, ds)), qk)
    v0 = 64 - cfg.vlead
    for db in range(8):
        for i in range(4):
            put(v0 + 8 * db + 2 * i, ("rd", f"V{db}", vread(vs_slot, db, i >> 1, i & 1)), pv)
    for ds in range(4):
        put(v0 + 64 + 2 * ds, ("rd", "K0", kread((ks_slot + 1) & 3, 0, ds)), knext)
    put(cfg.m0K_gap, f"s_add_u32 m0, s{sW}, {KBASE + ((u - 1) & 3) * 16384}", dma)
    put(cfg.m0V_gap, f"s_add_u32 m0, s{sW}, {VBASE + ((u + 1) & 3) * 16384}", dma)
    for j in range(4):
        put(cfg.dmaK_gaps[j], ("vm", "kv", dmaK(j, cfg)), dma, 2)
        put(cfg.dmaV_gaps[j], ("vm", "kv", dmaV(j, cfg)), dma, 2)
    for kb in (1, 2, 3): put(16 * kb - 2, ("wl", f"K{kb}"), qk)
    for db in range(8): put(64 + 8 * db - 2, ("wl", f"V{db}"), pv)
    put(126, ("wl", "K0"), knext)
    put(cfg.bar_gap, "s_waitcnt vmcnt(8)", bar)
    put(cfg.bar_gap, "s_barrier", bar)
    put_from(cfg.dmaV_gaps[3] + 2, f"s_add_u32 s{sT}, s{sT}, 16384", dma)
    for op in tail_ops[:-1]: put_from(123, op, True)
    ce = lambda j: cfg.exp0 + 3 + 4 * j
    for j in range(32):
        if ce(j) >= 128: put_from(ce(j) - 128, cvt(j, parc), prev, latest=50)
    for j in range(32):
        if ce(j) < 128: put_from(ce(j), cvt(j, parn), qk)
    seq = []; sq = 0
    for n in range(128):
        if n < 64:
            if qk: seq.append(qk_mfma(n))
        elif pv: seq.append(pv_mfma(n - 64, parc))
        seq += gaps[n]
        if n in sgap:
            if pv: seq.append(smf(parc, sq))
            sq += 1
            seq += sgap[n]
    if tail_ops: seq.append(tail_ops[-1])
    a = Asm()
    Emitter(a).emit(seq)
    return a

def stamp(a, cfg):
    if cfg.stamps:
        a("s_memtime s[90:91]\ns_waitcnt lgkmcnt(0)\nv_mov_b32 v22, s92\nv_cmp_eq_u32 vcc, v22, v1\nv_mov_b32 v22, s90\ns_add_u32 s92, s92, 16\nv_cndmask_b32 v23, v23, v22, vcc")

def setup(a, cfg, name):
    a(f"""
    s_cmp_ge_u32 s2, 256
    s_cbranch_scc1 L1_end
    s_load_dwordx8 s[48:55], s[0:1], 0
    s_load_dwordx4 s[56:59], s[0:1], 48
    s_load_dwordx2 s[60:61], s[0:1], 96
    """)
    if cfg.stamps: a("s_memtime s[94:95]\ns_memrealtime s[96:97]\ns_mov_b32 s92, 16")
    l, g, c16, w, t0, t1, t2, t3 = 64, 65, 66, 67, 68, 69, 70, 71
    a(f"""
    v_lshrrev_b32 v{w}, 6, v0
    v_and_b32 v{l}, 63, v0
    s_and_b32 s{sHD}, s2, 7
    v_readfirstlane_b32 s{sWV}, v{w}
    s_lshr_b32 s{sQB}, s2, 3
    s_and_b32 s3, s{sQB}, 3
    s_lshl_b32 s{sHD}, s{sHD}, 2
    s_add_u32 s{sHD}, s{sHD}, s3
    s_lshr_b32 s{sQB}, s{sQB}, 2
    v_lshrrev_b32 v{g}, 4, v{l}
    v_and_b32 v{c16}, 15, v{l}
    v_lshlrev_b32 v{vL16}, 4, v{l}
    s_lshl_b32 s{sW}, s{sWV}, 12
    s_lshl_b32 s{sW4}, s{sWV}, 14
    s_lshl_b32 s{sW2}, s{sWV}, 11
    s_cmp_eq_u32 s{sWV}, 3
    s_cselect_b32 s{sW3}, 0, s{sWV}
    s_mul_i32 s{sT0}, s{sHD}, 3
    s_lshl_b32 s3, s{sHD}, 1
    s_add_u32 s3, s3, 22
    s_min_u32 s{sT0}, s{sT0}, s3
    s_mov_b32 s{sFB}, 0
    """)
    a(f"""
    s_lshl_b32 s3, s{sQB}, 8
    s_lshl_b32 s4, s{sWV}, 6
    s_add_u32 s3, s3, s4
    v_lshrrev_b32 v{t0}, 3, v{l}
    v_add_u32 v{t1}, s3, v{t0}
    v_lshlrev_b32 v{t1}, 10, v{t1}
    v_and_b32 v{t2}, 7, v{l}
    v_xor_b32 v{t3}, v{t2}, v{g}
    v_lshl_add_u32 v{vXD}, v{t3}, 4, v{t1}
    v_xor_b32 v{t3}, 4, v{t3}
    v_lshl_add_u32 v{vXD + 1}, v{t3}, 4, v{t1}
    v_add_u32 v{vXD + 1}, {8192 - 1024}, v{vXD + 1}
    v_add_u32 v{vXD + 2}, {2 * (8192 - 1024)}, v{vXD}
    v_add_u32 v{vXD + 3}, {2 * (8192 - 1024)}, v{vXD + 1}
    """)
    a(f"""
    s_lshr_b32 s3, s{sWV}, 1
    s_lshl_b32 s3, s3, 5
    s_and_b32 s4, s{sWV}, 1
    s_lshl_b32 s4, s4, 2
    s_add_u32 s3, s3, s4
    v_add_u32 v{t1}, s3, v{g}
    v_lshlrev_b32 v{t1}, 13, v{t1}
    v_lshlrev_b32 v{t3}, 1, v{g}
    v_xor_b32 v{t3}, v{t3}, v{c16}
    v_lshl_add_u32 v{vQD}, v{t3}, 4, v{t1}
    v_xor_b32 v{t3}, 8, v{t3}
    v_lshl_add_u32 v{vQD + 1}, v{t3}, 4, v{t1}
    v_add_u32 v{vQD + 1}, {65536 - 1024}, v{vQD + 1}
    v_add_u32 v{vQD + 2}, {2 * (65536 - 1024)}, v{vQD}
    v_add_u32 v{vQD + 3}, {2 * (65536 - 1024)}, v{vQD + 1}
    """)
    a(f"""
    v_lshrrev_b32 v{t1}, 5, v{l}
    v_and_b32 v{t0}, 3, v{t0}
    v_lshl_add_u32 v{t1}, v{t1}, 3, v{t0}
    v_add_u32 v{t1}, s3, v{t1}
    v_mul_u32_u24 v{t1}, 2752, v{t1}
    v_lshlrev_b32 v{t3}, 1, v{g}
    v_xor_b32 v{t3}, v{t3}, v{t2}
    v_lshl_add_u32 v{vW1D}, v{t3}, 4, v{t1}
    v_add_u32 v{vW1D + 1}, {16 * 2752 - 1024}, v{vW1D}
    s_waitcnt lgkmcnt(0)
    """)
    srd(a, sX, 48, 49, 2097152)
    a(f"s_lshl_b32 s3, s{sHD}, 8")
    srd(a, sWQ, 54, 55, 0, off="s3")
    a(f"s_sub_u32 s{sWQ + 2}, 4194304, s3")
    a(f"s_lshl_b32 s3, s{sT0}, 5")
    srd(a, sW1, 56, 57, 0, off="s3")
    a(f"s_sub_u32 s{sW1 + 2}, {512 * 2752}, s3")
    return (l, g, c16, w, t0, t1, t2, t3)

def setup2(a, cfg, tmp):
    l, g, c16, w, t0, t1, t2, t3 = tmp
    a(f"s_lshl_b32 s3, s{sHD}, 19")
    srd(a, sK, 50, 51, 524288, off="s3")
    srd(a, sV, 52, 53, 524288, off="s3")
    srd(a, sWO, 60, 61, WS_O_BYTES, off=WS_O)
    srd(a, sWH, 60, 61, WS_H_BYTES, off=WS_H)
    a(f"""
    v_lshrrev_b32 v{t0}, 1, v{c16}
    v_xor_b32 v{t0}, v{t0}, v{g}
    v_lshlrev_b32 v{t1}, 7, v{c16}
    v_add_u32 v{t1}, s{sW4}, v{t1}
    v_lshl_add_u32 v{vXA}, v{t0}, 4, v{t1}
    v_xor_b32 v{t0}, 4, v{t0}
    v_lshl_add_u32 v{vXA + 1}, v{t0}, 4, v{t1}
    """)
    a(f"""
    v_lshrrev_b32 v{t0}, 2, v{c16}
    v_lshl_add_u32 v{t0}, v{g}, 2, v{t0}
    v_and_b32 v{t2}, 3, v{c16}
    v_lshlrev_b32 v{t2}, 3, v{t2}
    v_lshl_add_u32 v{t1}, v{t0}, 8, v{t2}
    v_add_u32 v{t1}, {VBASE}, v{t1}
    v_and_b32 v{t3}, 7, v{t0}
    s_lshl_b32 s3, s{sWV}, 1
    """)
    for s in range(8):
        a(f"""
        s_add_u32 s4, s3, {s}
        s_and_b32 s4, s4, 7
        v_xor_b32 v{vVA + s}, s4, v{t3}
        v_lshl_add_u32 v{vVA + s}, v{vVA + s}, 5, v{t1}
        """)
    a(f"""
    v_lshl_add_u32 v{t1}, v{t0}, 7, v{t2}
    v_add_u32 v{t1}, {W1BASE}, v{t1}
    v_bfe_u32 v{t3}, v{t0}, 1, 2
    s_lshl_b32 s5, s{sQB}, 14
    s_add_u32 s5, s5, s{sW}
    """)
    for s in range(3):
        a(f"""
        s_add_u32 s4, s{sW3}, {s}
        s_sub_u32 s3, s4, 3
        s_cmp_ge_u32 s4, 3
        s_cselect_b32 s4, s3, s4
        v_xor_b32 v{vW1A + s}, s4, v{t3}
        v_lshl_add_u32 v{vW1A + s}, v{vW1A + s}, 5, v{t1}
        s_add_u32 s3, s4, s{sT0}
        s_lshl_b32 s{sSO + s}, s3, 5
        s_and_b32 s6, s3, 1
        s_lshl_b32 s6, s6, 3
        s_lshr_b32 s3, s3, 1
        s_lshl_b32 s3, s3, 17
        s_add_u32 s3, s3, s6
        s_add_u32 s3, s3, s5
        s_cmp_ge_u32 s{sHD}, 22
        s_cselect_b32 s6, 2, 7
        s_cmp_eq_u32 s4, s6
        s_cselect_b32 s{sH + s}, {WS_H_BYTES}, s3
        """)
    a(f"""
    v_lshrrev_b32 v{t0}, 1, v{g}
    v_and_b32 v{t1}, 1, v{g}
    v_lshl_or_b32 v{t0}, v{t1}, 1, v{t0}
    v_xor_b32 v{t0}, v{t0}, v{c16}
    v_lshlrev_b32 v{t1}, 8, v{c16}
    s_lshl_b32 s5, s{sQB}, 21
    s_lshl_b32 s6, s{sWV}, 19
    s_add_u32 s5, s5, s6
    s_lshl_b32 s6, s{sHD}, 12
    s_add_u32 s5, s5, s6
    """)
    for s in range(4):
        a(f"""
        s_add_u32 s4, s{sWV}, {s}
        s_and_b32 s4, s4, 3
        s_lshl_b32 s3, s4, 2
        v_xor_b32 v{vKA + s}, s3, v{t0}
        v_lshl_add_u32 v{vKA + s}, v{vKA + s}, 4, v{t1}
        s_lshl_b32 s4, s4, 10
        s_add_u32 s{sO + s}, s5, s4
        """)
    a(f"""
    v_lshl_add_u32 v{t0}, v{w}, 4, v{g}
    v_lshlrev_b32 v{t0}, 8, v{t0}
    v_xor_b32 v{t1}, v{g}, v{c16}
    """)
    for j in range(4):
        a(f"v_xor_b32 v{t2}, {4 * j}, v{t1}\nv_lshl_add_u32 v{vKD + j}, v{t2}, 4, v{t0}")
    a(f"v_lshlrev_b32 v{t1}, 1, v{g}\nv_xor_b32 v{t1}, v{t1}, v{c16}")
    for j in range(2):
        a(f"v_xor_b32 v{t2}, {8 * j}, v{t1}\nv_lshl_add_u32 v{vVD + j}, v{t2}, 4, v{t0}")
    a(f"""
    v_and_b32 v{t0}, 3, v{l}
    v_mov_b32 v{t1}, 0x3f803f80
    v_cmp_gt_u32 vcc, 2, v{t0}
    v_mov_b32 v{t2}, 0xeeeeeeee
    v_mov_b32 v{vIDX}, 0x44444444
    v_cndmask_b32 v{vONE}, 0, v{t1}, vcc
    v_cmp_eq_u32 s[{sM1}:{sM1 + 1}], 1, v{t0}
    v_cmp_eq_u32 s[{sM2}:{sM2 + 1}], 2, v{t0}
    v_cmp_eq_u32 s[{sM3}:{sM3 + 1}], 3, v{t0}
    v_mov_b32 v{vONE + 1}, v{vONE}
    v_mov_b32 v{vONE + 2}, v{vONE}
    v_cndmask_b32 v{vIDX}, v{vIDX}, v{t2}, s[{sM1}:{sM1 + 1}]
    v_mov_b32 v{vONE + 3}, v{vONE}
    v_lshlrev_b32 v{t0}, 3, v{g}
    """)
    for i in range(16): a(f"v_accvgpr_write_b32 a{aSX + i}, 0")
    for i in range(12): a(f"v_mov_b32 v{vCS + i}, 0")
    return t0

def XF(c, qb, ks): return aXF + (c & 1) * 32 + (qb * 2 + ks) * 4
def WF(gi, ks): return aWF + (gi & 3) * 8 + ks * 4
def acc(s, qb):
    if s < 8: return ((vQ if s % 2 == 0 else vS) + ((s >> 1) * 4 + qb) * 4)
    return vH + ((s - 8) * 4 + qb) * 4
def dma_x(c):
    ops = []
    for hh in range(2):
        ops.append([f"s_add_u32 m0, s{sW4}, {(c & 1) * 8192 + hh * 4096}", f"s_mov_b32 s{sT}, {c * 128 + hh * 32768}"])
        for i in range(4):
            ops.append(("vm", f"x{c}", f"buffer_load_dwordx4 v{vXD + i}, {sr(sX, 4)}, s{sT} offen offset:{i * 1024} lds"))
    return ops
def dma_w(c):
    ops = [[f"s_add_u32 m0, s{sW}, {VBASE + (c % 3) * 16384}", f"s_mov_b32 s{sT}, {c * 524288}"]]
    for j in range(4):
        ops.append(("vm", f"w{c}", f"buffer_load_dwordx4 v{vQD + j}, {sr(sWQ, 4)}, s{sT} offen offset:{j * 1024} lds"))
    ops.append([f"s_add_u32 m0, s{sW2}, {W1BASE + (c % 3) * 8192}", f"s_mov_b32 s{sT}, {c * 64 * 2752}"])
    for i in range(2):
        ops.append(("vm", f"w{c}", f"buffer_load_dwordx4 v{vW1D + i}, {sr(sW1, 4)}, s{sT} offen offset:{i * 1024} lds"))
    return ops
def dma_kv0(cfg):
    ops = []
    for i in range(3):
        ops.append([f"s_add_u32 m0, s{sW}, {KBASE + i * 16384}", f"s_mov_b32 s{sT}, {i * 16384}"])
        for j in range(4): ops.append(("vm", f"K{i}", dmaK(j, cfg)))
    ops.append([f"s_add_u32 m0, s{sW}, {VBASE}", f"s_mov_b32 s{sT}, 0"])
    for j in range(4): ops.append(("vm", "V0", dmaV(j, cfg)))
    return ops
def flat(ops):
    out = []
    for o in ops:
        if isinstance(o, list): out += o
        else: out.append(o)
    return out
def xreads(c):
    return [("rd", f"x{c}", f"ds_read_b128 {ar(XF(c, qb, ks), 4)}, v{vXA + ks} offset:{(c & 1) * 8192 + qb * 2048}") for qb in range(4) for ks in range(2)]
def wreads(c, s):
    gi = c * 11 + s; out = []
    for ks in range(2):
        for e in range(2):
            d = ar(WF(gi, ks) + 2 * e, 2)
            if s < 8: t = f"ds_read_b64_tr_b16 {d}, v{vVA + s} offset:{(c % 3) * 16384 + ks * 8192 + e * 4096}"
            else: t = f"ds_read_b64_tr_b16 {d}, v{vW1A + s - 8} offset:{(c % 3) * 8192 + ks * 4096 + e * 2048}"
            out.append(("rd", f"w{gi}", t))
    return out

def gemm(em, cfg):
    mf = []; start = {}
    for c in range(8):
        for s in range(11):
            gi = c * 11 + s; start[gi] = len(mf)
            for i in range(8):
                qb = i >> 1; ks = i & 1
                first = (c == 0 and ks == 0)
                if qb & 1: ks = 1 - ks
                if s & 1: qb = 3 - qb
                d = vr(acc(s, qb), 4)
                mf.append(f"{MF} {d}, {ar(WF(gi, ks), 4)}, {ar(XF(c, qb, ks), 4)}, {'0' if first else d}")
            if s in (0, 1, 8):
                ci = {0: 0, 1: 1, 8: 2}[s]
                mf.append(f"{SMF} {vr(vCS + ci * 4, 4)}, {vr(vONE, 4)}, {ar(WF(gi, 0), 8)}, v{vIDX}")
        for qb in range(4):
            for ks in range(2):
                d = ar(aGR + qb * 4, 4); x = ar(XF(c, qb, ks), 4)
                mf.append(f"{MF} {d}, {x}, {x}, {'0' if (c == 0 and ks == 0) else d}")
            mf.append(f"{SMF} {ar(aSX + qb * 4, 4)}, {vr(vONE, 4)}, {ar(XF(c, qb, 0), 8)}, v{vIDX}")
    sc = Sched(mf)
    for gi in range(88):
        c, s = divmod(gi, 11)
        if gi >= 2:
            p = start[gi] - 14
            for r in wreads(c, s):
                p = sc.put_from(p, r, mem=True, latest=start[gi] - 4) + 2
    for gi in range(1, 88):
        p = start[gi] - 1
        while not sc.free(p): p -= 1
        assert p >= start[gi] - 3
        sc.put(p, ("wl", f"w{gi}"))
    for c in range(1, 8):
        p = sc.put_from(start[c * 11 - 1] + 1, ("wv", f"w{c}"), latest=start[c * 11] - 16)
        sc.put_from(p, "s_barrier", latest=start[c * 11] - 15)
    def place_dma(ops, p):
        for o in ops:
            if isinstance(o, list):
                for x in o: p = sc.put_from(p, x)
                p += 1
            else:
                p = sc.put_from(p, o, cost=2, mem=True) + 1
        return p
    for c in range(8):
        p = start[c * 11]
        if 1 <= c <= 5: p = place_dma(dma_w(c + 2), p)
        if c == 7: p = place_dma(dma_kv0(cfg), p)
        if c <= 6:
            p = max(p, start[c * 11 + 3])
            p = sc.put_from(p, ("wv", f"x{c + 1}")) + 1
            for r in xreads(c + 1): p = sc.put_from(p, r, mem=True) + 1
        if c <= 4:
            p = sc.put_from(p + 4, ("wl", f"x{c + 1}"))
            p = place_dma(dma_x(c + 3), p)
            assert p < start[c * 11 + 10], (p, start[c * 11 + 10])
    em.emit(sc.seq())

def fold(a, em, cfg):
    T = [21, 22, 54, 55]
    PR = 56
    R = 28
    a(f"""
    v_and_b32 v{T[0]}, 0xf0, v{vL16}
    v_lshrrev_b32 v{T[0]}, 2, v{T[0]}
    s_lshl_b32 s3, s{sWV}, 7
    s_add_u32 s3, s3, {CSBASE}
    s_lshl_b32 s4, s{sW3}, 6
    s_add_u32 s4, s4, {CSBASE + 1024}
    v_add_u32 v{T[1]}, s4, v{T[0]}
    v_add_u32 v{T[0]}, s3, v{T[0]}
    """)
    for i in range(3): a(f"v_add_f32 v{vCS + 4 * i}, v{vCS + 4 * i}, v{vCS + 4 * i + 1}")
    em.emit([("rd", "cw", f"ds_write_b32 v{T[0]}, v{vCS + 4 * i} offset:{i * 64 + o}") for i in range(2) for o in (0, 512)])
    em.emit([("rd", "cw", f"ds_write_b32 v{T[1]}, v{vCS + 8} offset:{o}") for o in (0, 192)])
    a(f"""
    v_bfe_u32 v{T[2]}, v{vL16}, 4, 4
    v_lshrrev_b32 v{T[3]}, 2, v{T[2]}
    v_lshl_add_u32 v{T[2]}, v{T[3]}, 4, v{T[2]}
    v_lshlrev_b32 v{T[2]}, 2, v{T[2]}
    """)
    for qb in range(4):
        for r in range(4): a(f"v_accvgpr_read_b32 v{32 + qb * 4 + r}, a{aGR + qb * 4 + r}")
    for r, m in ((1, sM1), (2, sM2), (3, sM3)):
        for qb in range(4): a(f"v_cndmask_b32 v{32 + qb * 4}, v{32 + qb * 4}, v{32 + qb * 4 + r}, s[{m}:{m + 1}]")
    em.emit([("rd", "gr", f"ds_bpermute_b32 v{R + qb}, v{T[2]}, v{32 + qb * 4}") for qb in range(4)])
    for qb in range(4):
        a(f"v_accvgpr_read_b32 v{PR + 2 * qb}, a{aSX + qb * 4}\nv_accvgpr_read_b32 v{PR + 2 * qb + 1}, a{aSX + qb * 4 + 1}")
    a(f"""
    v_lshrrev_b32 v{T[1]}, 8, v{vL16}
    v_lshlrev_b32 v{T[1]}, 4, v{T[1]}
    v_add_u32 v{T[0]}, s3, v{T[1]}
    v_add_u32 v{T[1]}, s4, v{T[1]}
    """)
    for qb in range(4): a(f"v_add_f32 v{PR + 2 * qb}, v{PR + 2 * qb}, v{PR + 2 * qb + 1}")
    for qb in range(4): a(f"v_mul_f32 v{PR + 2 * qb}, {f32hex(-1.0 / 512)}, v{PR + 2 * qb}")
    em.emit([("wl", "gr"), "s_barrier"])
    csr = lambda s: (32 + 4 * s) if s < 4 else (vCS + 4 * (s - 4))
    em.emit([("rd", f"cs{s}", f"ds_read_b128 {vr(csr(s), 4)}, v{T[0]} offset:{s * 64}") for s in range(8)])
    for qb in range(4): a(f"v_mul_f32 v{R + qb}, {f32hex(1.0 / 512)}, v{R + qb}")
    for qb in range(4): a(f"v_fma_f32 v{R + qb}, -v{PR + 2 * qb}, v{PR + 2 * qb}, v{R + qb}")
    for qb in range(4): a(f"v_max_f32 v{R + qb}, 0, v{R + qb}")
    for qb in range(4): a(f"v_add_f32 v{R + qb}, {f32hex(1e-5)}, v{R + qb}")
    for qb in range(4): a(f"v_rsq_f32 v{R + qb}, v{R + qb}")
    for qb in range(4): a(f"v_mul_f32 v{PR + 2 * qb + 1}, {f32hex(QSCALE)}, v{R + qb}")
    for J in range(4):
        em.emit([("wl", f"cs{2 * J + 1}")])
        for qb in range(4):
            pr = vr(PR + 2 * qb, 2)
            for s in (2 * J, 2 * J + 1):
                for hf in range(2):
                    d = vr(acc(s, qb) + 2 * hf, 2)
                    a(f"v_pk_fma_f32 {d}, {vr(csr(s) + 2 * hf, 2)}, {pr}, {d} op_sel_hi:[1,0,1]")
            for s in (2 * J, 2 * J + 1):
                for hf in range(2):
                    d = vr(acc(s, qb) + 2 * hf, 2)
                    a(f"v_pk_mul_f32 {d}, {d}, {pr} op_sel:[0,1]")
            e = acc(2 * J, qb); o = acc(2 * J + 1, qb)
            a(f"v_cvt_pk_bf16_f32 v{e}, v{e}, v{e + 1}\nv_cvt_pk_bf16_f32 v{e + 1}, v{e + 2}, v{e + 3}")
            a(f"v_cvt_pk_bf16_f32 v{e + 2}, v{o}, v{o + 1}\nv_cvt_pk_bf16_f32 v{e + 3}, v{o + 2}, v{o + 3}")
        for qb in range(4):
            e = acc(2 * J, qb)
            a(f"v_permlane16_swap_b32 v{e}, v{e + 2}\nv_permlane16_swap_b32 v{e + 1}, v{e + 3}")
        if J == 1:
            em.emit([("rd", "cf", f"ds_read_b128 {vr(32 + 4 * s, 4)}, v{T[1]} offset:{s * 64}") for s in range(3)])
    em.emit([("wv", "b1")])
    for s in range(3):
        for hf in range(2):
            b = vB1 + 2 * s + hf
            a(f"v_lshlrev_b32 v{vCS + 4 * s + 2 * hf}, 16, v{b}\nv_and_b32 v{vCS + 4 * s + 2 * hf + 1}, 0xffff0000, v{b}")
    k = 2.0 * 0.7978845608028654 * 1.4426950408889634
    a(f"v_mov_b32 v44, {f32hex(-k * 0.044715)}\nv_mov_b32 v45, {f32hex(-k)}")
    em.emit([("wl", "cf")])
    for s in range(3):
        t = vS
        for qb in range(4):
            for hf in range(2):
                d = vr(acc(8 + s, qb) + 2 * hf, 2)
                a(f"v_pk_fma_f32 {d}, {vr(32 + 4 * s + 2 * hf, 2)}, {vr(PR + 2 * qb, 2)}, {d} op_sel_hi:[1,0,1]")
        for qb in range(4):
            rp = vr(R + (qb & ~1), 2); sel = qb & 1
            for hf in range(2):
                d = vr(acc(8 + s, qb) + 2 * hf, 2)
                a(f"v_pk_fma_f32 {d}, {d}, {rp}, {vr(vCS + 4 * s + 2 * hf, 2)} op_sel:[0,{sel},0] op_sel_hi:[1,{sel},1]")
        h0 = acc(8 + s, 0)
        for i in range(8): a(f"v_pk_mul_f32 {vr(t + 2 * i, 2)}, {vr(h0 + 2 * i, 2)}, {vr(h0 + 2 * i, 2)}")
        for i in range(8): a(f"v_pk_fma_f32 {vr(t + 2 * i, 2)}, {vr(t + 2 * i, 2)}, v[44:45], v[44:45] op_sel:[0,0,1] op_sel_hi:[1,0,1]")
        for i in range(8): a(f"v_pk_mul_f32 {vr(t + 2 * i, 2)}, {vr(t + 2 * i, 2)}, {vr(h0 + 2 * i, 2)}")
        for i in range(16): a(f"v_exp_f32 v{t + i}, v{t + i}")
        for i in range(8): a(f"v_pk_add_f32 {vr(t + 2 * i, 2)}, {vr(t + 2 * i, 2)}, 1.0 op_sel_hi:[1,0]")
        for i in range(16): a(f"v_rcp_f32 v{t + i}, v{t + i}")
        for i in range(8): a(f"v_pk_mul_f32 {vr(t + 2 * i, 2)}, {vr(t + 2 * i, 2)}, {vr(h0 + 2 * i, 2)}")
        for i in range(8): a(f"v_cvt_pk_bf16_f32 v{h0 + i}, v{t + 2 * i}, v{t + 2 * i + 1}")
        em.emit([("vm", "hs", f"buffer_store_dwordx2 {vr(h0 + 2 * qb, 2)}, v{vL16}, {sr(sWH, 4)}, s{sH + s} offen offset:{qb * 1024}") for qb in range(4)])

def rowmax_finish(a, src, delta):
    for sw in ("v_permlane32_swap_b32", "v_permlane16_swap_b32"):
        for qb in range(4): a(f"v_mov_b32 v{src(qb) + 1}, v{src(qb)}")
        for qb in range(4): a(f"{sw} v{src(qb)}, v{src(qb) + 1}")
        for qb in range(4): a(f"v_max_f32 v{src(qb)}, v{src(qb)}, v{src(qb) + 1}")
    for qb in range(4):
        for r in range(4): a(f"v_sub_f32 v{vNM + qb * 4 + r}, {f32hex(-delta)}, v{src(qb)}")

def head(cfg):
    a = Asm(); em = Emitter(a)
    em.emit([("rd", "K0", kread(0, 0, ds)) for ds in range(4)])
    for i in range(16): a(f"v_mov_b32 v{vL + i}, 0")
    em.emit([("wl", "K0")])
    sc = Sched([qk_mfma(n, czero=True) for n in range(64)])
    for kb in (1, 2, 3):
        for ds in range(4): sc.put(16 * (kb - 1) + 2 * ds, ("rd", f"K{kb}", kread(0, kb, ds)), mem=True)
        sc.put(16 * kb - 2, ("wl", f"K{kb}"))
    for ds in range(4): sc.put(50 + 2 * ds, ("rd", "Kn", kread(1, 0, ds)), mem=True)
    sc.put(cfg.m0K_gap, f"s_add_u32 m0, s{sW}, {KBASE + 3 * 16384}")
    sc.put(cfg.m0V_gap, f"s_add_u32 m0, s{sW}, {VBASE + 1 * 16384}")
    for j in range(4):
        sc.put(cfg.dmaK_gaps[j], ("vm", "kv", dmaK(j, cfg)), 2, mem=True)
        sc.put(cfg.dmaV_gaps[j], ("vm", "kv", dmaV(j, cfg)), 2, mem=True)
    sc.put_from(cfg.dmaV_gaps[3] + 2, f"s_add_u32 s{sT}, s{sT}, 16384")
    mx = lambda qb: vP + 32 + 2 * qb
    for n in range(14):
        qb = n & 3; s = vS + 4 * n
        if n < 4:
            p = sc.put_from(4 * n + 9, f"v_max3_f32 v{mx(qb)}, v{s}, v{s + 1}, v{s + 2}")
            sc.put_from(p, f"v_max_f32 v{mx(qb)}, v{mx(qb)}, v{s + 3}")
        else:
            p = sc.put_from(4 * n + 9, f"v_max3_f32 v{mx(qb)}, v{mx(qb)}, v{s}, v{s + 1}")
            sc.put_from(p, f"v_max3_f32 v{mx(qb)}, v{mx(qb)}, v{s + 2}, v{s + 3}")
    z = 0; p = 0
    while z < 128:
        while p < 64 and not sc.free(p): p += 1
        if p >= 64: break
        sc.put(p, f"v_accvgpr_write_b32 a{z}, 0"); z += 1
    em.emit(sc.seq())
    for i in range(z, 128): a(f"v_accvgpr_write_b32 a{i}, 0")
    a(f"s_cmp_lg_u32 s{sFB}, 0\ns_cbranch_scc1 L1_havemax")
    b = Asm()
    for n in (14, 15):
        qb = n & 3; s = vS + 4 * n
        b(f"v_max3_f32 v{mx(qb)}, v{mx(qb)}, v{s}, v{s + 1}\nv_max3_f32 v{mx(qb)}, v{mx(qb)}, v{s + 2}, v{s + 3}")
    rowmax_finish(b, mx, cfg.delta)
    c = Asm()
    c("L1_havemax:")
    for n in range(16):
        for hf in range(2):
            d = vr(vS + 4 * n + 2 * hf, 2)
            c(f"v_pk_add_f32 {d}, {d}, {vr(vNM + (n & 3) * 4, 2)}")
    nexp = (127 - cfg.exp0) // 2 + 1
    ncvt = sum(1 for j in range(32) if cfg.exp0 + 3 + 4 * j < 128)
    for k in range(nexp):
        c(expi(k))
        if k % 2 == 0 and k >= 2 and k // 2 - 1 < ncvt: c(cvt(k // 2 - 1, 0))
    assert (nexp - 1 - (nexp - 1) % 2) // 2 - 1 >= ncvt - 1
    c("s_waitcnt vmcnt(8) lgkmcnt(0)\ns_barrier")
    return a, b, c

def epilogue(cfg):
    a = Asm()
    a("s_nop 7")
    for qb in range(4): a(f"v_add_f32 v{vL + qb * 4}, v{vL + qb * 4}, v{vL + qb * 4 + 1}")
    a(f"v_max3_f32 v21, v{vL}, v{vL + 4}, v{vL + 8}")
    a(f"""
    v_cmp_nle_f32 s[4:5], v{vL}, 1.0
    v_cmp_nle_f32 s[6:7], v{vL + 4}, 1.0
    """)
    for qb in range(4): a(f"v_rcp_f32 v{vL + qb * 4 + 2}, v{vL + qb * 4}")
    a(f"""
    s_or_b64 s[4:5], s[4:5], s[6:7]
    v_cmp_nle_f32 s[6:7], v{vL + 8}, 1.0
    v_cmp_nle_f32 vcc, v{vL + 12}, 1.0
    v_add_u32 v28, {1 * 131072}, v{vL16}
    v_add_u32 v29, {2 * 131072}, v{vL16}
    v_add_u32 v30, {3 * 131072}, v{vL16}
    s_or_b64 s[4:5], s[4:5], s[6:7]
    s_or_b64 s[4:5], s[4:5], vcc
    s_mov_b32 s3, {f32hex(2.0 ** -125)}
    """)
    n = 0
    for j in range(4):
        for qb in range(4):
            t = vS + (n % 4) * 16; n += 1
            for T in range(2):
                for r in range(4):
                    a(f"v_accvgpr_read_b32 v{t + T * 4 + r}, a{aO + ((2 * j + T) * 4 + qb) * 4 + r}")
            if j == 0:
                a(f"v_max3_f32 v21, abs(v{t}), abs(v{t + 1}), abs(v{t + 2})")
                a(f"v_max3_f32 v21, v21, abs(v{t + 3}), abs(v{t + 4})")
                a(f"v_max3_f32 v21, v21, abs(v{t + 5}), abs(v{t + 6})")
                a(f"v_cmp_gt_f32 vcc, s3, v21")
            for i in range(4):
                a(f"v_pk_mul_f32 {vr(t + 2 * i, 2)}, {vr(t + 2 * i, 2)}, {vr(vL + qb * 4 + 2, 2)} op_sel_hi:[1,0]")
            if j == 0: a("s_or_b64 s[4:5], s[4:5], vcc")
            for i in range(4):
                a(f"v_cvt_pk_bf16_f32 v{t + 8 + i}, v{t + 2 * i}, v{t + 2 * i + 1}")
            va = vL16 if qb == 0 else 27 + qb
            a(f"buffer_store_dwordx4 {vr(t + 8, 4)}, v{va}, {sr(sWO, 4)}, s{sO + j} offen")
        if j == 0:
            a(f"""
            s_cmp_lg_u64 s[4:5], 0
            s_cselect_b32 s3, 1, {1 if cfg.force_fb else 0}
            s_lshl_b32 s4, s{sWV}, 2
            s_add_u32 s4, s4, {FLBASE}
            v_mov_b32 v21, s3
            v_mov_b32 v22, s4
            ds_write_b32 v22, v21
            """)
    a(f"""
    v_mov_b32 v22, {FLBASE}
    s_cmp_lg_u32 s{sFB}, 0
    s_cbranch_scc1 L1_done
    s_waitcnt lgkmcnt(0)
    s_barrier
    ds_read_b128 v[28:31], v22
    s_waitcnt lgkmcnt(0)
    v_or3_b32 v28, v28, v29, v30
    v_or_b32 v28, v28, v31
    s_nop 0
    v_readfirstlane_b32 s3, v28
    s_nop 3
    s_cmp_eq_u32 s3, 0
    s_cbranch_scc1 L1_done
    """)
    return a

def fallback(cfg):
    a = Asm(); em = Emitter(a)
    mx = lambda qb: vP + 2 * qb
    a(f"s_mov_b32 s{sFB}, 1\ns_waitcnt vmcnt(0)\ns_barrier")
    for j in range(4): a(f"v_subrev_u32 v{vKD + j}, 32768, v{vKD + j}")
    for qb in range(4): a(f"v_mov_b32 v{mx(qb)}, 0xff800000")
    a(f"s_mov_b32 s{sT}, 0\ns_mov_b32 m0, s{sW}\nL1_fbloop:")
    em.emit([("vm", "k", dmaK(j, cfg)) for j in range(4)])
    a("s_waitcnt vmcnt(0)\ns_barrier")
    for kb in range(4):
        em.emit([("rd", "K", kread(0, kb, ds)) for ds in range(4)] + [("wl", "K")])
        for n in range(16): a(qk_mfma(kb * 16 + n, czero=True))
    a("s_barrier\ns_nop 7")
    for n in range(16):
        qb = n & 3; s = vS + 4 * n
        a(f"v_max3_f32 v{mx(qb)}, v{mx(qb)}, v{s}, v{s + 1}\nv_max3_f32 v{mx(qb)}, v{mx(qb)}, v{s + 2}, v{s + 3}")
    a(f"s_add_u32 s{sT}, s{sT}, 16384\ns_cmp_lt_u32 s{sT}, 524288\ns_cbranch_scc1 L1_fbloop")
    rowmax_finish(a, mx, 0.0)
    em.emit(flat(dma_kv0(cfg)))
    a("s_waitcnt vmcnt(0)\ns_branch L1_attn")
    return a

def build(cfg, name):
    a = Asm(); em = Emitter(a)
    tmp = setup(a, cfg, name)
    if cfg.warm:
        a(f"""
        s_getpc_b64 s[4:5]
        L1_pc:
        s_sub_u32 s4, s4, L1_pc-{name}
        s_subb_u32 s5, s5, 0
        v_lshlrev_b32 v72, 7, v0
        v_mov_b32 v75, s5
        v_mov_b32 v77, s5
        v_add_u32 v73, 32768, v72
        v_min_u32 v72, L1_end-{name}, v72
        v_min_u32 v73, L1_end-{name}, v73
        v_add_co_u32 v74, vcc, s4, v72
        s_nop 1
        v_addc_co_u32 v75, vcc, 0, v75, vcc
        v_add_co_u32 v76, vcc, s4, v73
        s_nop 1
        v_addc_co_u32 v77, vcc, 0, v77, vcc
        """)
    em.emit(flat(dma_x(0)) + flat(dma_w(0)))
    if cfg.warm:
        em.vm += ["warm", "warm"]
        a("global_load_dword v78, v[74:75], off\nglobal_load_dword v79, v[76:77], off")
    em.emit(flat(dma_x(1)) + flat(dma_w(1)) + flat(dma_w(2)))
    g8 = setup2(a, cfg, tmp)
    srd(a, sB1, 58, 59, 2752)
    em.emit([("vm", "b1", f"buffer_load_dwordx2 {vr(vB1 + 2 * s, 2)}, v{g8}, {sr(sB1, 4)}, s{sSO + s} offen") for s in range(3)])
    if cfg.stamps: a("v_mov_b32 v23, s94")
    stamp(a, cfg)
    em.emit([("wv", "x0")] + xreads(0) + [("wv", "warm" if cfg.warm else "w0"), "s_barrier"] + wreads(0, 0) + wreads(0, 1) + [("wl", "x0")] + flat(dma_x(2)) + [("wl", "w0")])
    stamp(a, cfg)
    gemm(em, cfg)
    stamp(a, cfg)
    a("s_nop 7\ns_nop 3")
    fold(a, em, cfg)
    em.emit([("wv", "K1")])
    a("L1_attn:")
    for j in range(4): a(f"v_add_u32 v{vKD + j}, 32768, v{vKD + j}")
    a(f"s_mov_b32 s{sT}, 16384\ns_barrier")
    fix_hazards(a)
    stamp(a, cfg)
    pre = list(a.ins)
    ha, hb, hc = head(cfg)
    fix_hazards(ha, pre); fix_hazards(hb, ha.ins); fix_hazards(hc, ha.ins + hb.ins)
    a.extend(ha); a.extend(hb); a.extend(hc)
    stamp(a, cfg)
    a(f"s_mov_b32 s{sCNT}, 8\ns_branch L1_u1\n.p2align 6\nL1_loop:")
    its = []
    for u in range(4):
        tail = (f"s_sub_u32 s{sCNT}, s{sCNT}, 1", f"s_cmp_lg_u32 s{sCNT}, 0", "s_cbranch_scc1 L1_loop") if u == 3 else ()
        it = build_iter(u, cfg, tail_ops=tail); its.append(it)
        if u == 1: a("L1_u1:")
        a.extend(it)
    stamp(a, cfg)
    tail = fix_hazards(build_iter(0, cfg, qk=False, knext=False, dma=False, bar=False), its[3].ins)
    a.extend(tail)
    ep = fix_hazards(epilogue(cfg), tail.ins)
    a.extend(ep)
    fb = fix_hazards(fallback(cfg), ep.ins)
    a.extend(fb)
    a("L1_done:")
    if cfg.stamps:
        stamp(a, cfg)
        a("s_waitcnt vmcnt(0)")
        stamp(a, cfg)
        a("s_memrealtime s[90:91]\ns_waitcnt lgkmcnt(0)\ns_sub_u32 s90, s90, s96\nv_mov_b32 v22, s92\nv_cmp_eq_u32 vcc, v22, v1\nv_mov_b32 v22, s90\ns_nop 0\nv_cndmask_b32 v23, v23, v22, vcc")
        srd(a, 4, 60, 61, 1 << 20, off=WS_ST)
        a("s_lshl_b32 s3, s2, 10\nv_lshl_add_u32 v22, v0, 2, s3\nbuffer_store_dword v23, v22, s[4:7], 0 offen")
    a("L1_end:\ns_endpgm")
    loop = its[1].ins + its[2].ins + its[3].ins + its[0].ins + its[1].ins + its[2].ins + its[3].ins
    errs = check_trace(pre + ha.ins + hb.ins + hc.ins + loop + tail.ins + ep.ins + fb.ins, "k1")
    errs += check_trace(fb.ins + pre[-8:] + ha.ins + hc.ins + loop, "k1fb")
    for e in errs[:30]: print("ERR", e)
    return a
```

```python
from common import *
MF = "v_mfma_f32_16x16x32_bf16"
LDS_BYTES = 131072
class Cfg:
    depth = 7
    stamps = False
    warm = True
    mapping = "A"
    ffn_first = True
    ldf = ""

NS = 8
aB = 0
aA = 128
vSA = 64; vFA = 128
vL16 = 1; vBA = 2
vHA = 6
vWD = 10
vWA = 14
vXA = 18; vX = 20; vB2 = 28
sO = 8; sH = 12; sWO = 16; sW2 = 20; sX = 24; sB2 = 28; sOUT = 32
sWV = 40; sLB = 41; sS1 = 42; sS2 = 43; sRB = 44; sCB = 45; sOB = 46; sHB = 47; sWOB = 62; sW2B = 63

def stamp(a, cfg):
    if cfg.stamps:
        a("s_memtime s[90:91]\ns_waitcnt lgkmcnt(0)\nv_mov_b32 v62, s92\nv_cmp_eq_u32 vcc, v62, v1\nv_mov_b32 v62, s90\ns_add_u32 s92, s92, 16\nv_cndmask_b32 v63, v63, v62, vcc")

def build(cfg, name):
    a = Asm(); em = Emitter(a)
    a(f"""
    s_cmp_ge_u32 s2, 256
    s_cbranch_scc1 L2_end
    s_load_dwordx2 s[48:49], s[0:1], 0
    s_load_dwordx2 s[50:51], s[0:1], 32
    s_load_dwordx4 s[52:55], s[0:1], 64
    s_load_dwordx2 s[56:57], s[0:1], 80
    s_load_dwordx2 s[60:61], s[0:1], 96
    """)
    if cfg.stamps: a("s_memtime s[94:95]\ns_memrealtime s[96:97]\ns_mov_b32 s92, 16")
    l, g, c16, w, t0, t1, t2, t3 = 40, 41, 42, 43, 44, 45, 46, 47
    a(f"""
    v_lshrrev_b32 v{w}, 6, v0
    v_and_b32 v{l}, 63, v0
    s_and_b32 s3, s2, 7
    v_readfirstlane_b32 s{sWV}, v{w}
    s_lshr_b32 s4, s2, 3
    """)
    if cfg.mapping == "A":
        a(f"s_and_b32 s5, s4, 3\ns_lshl_b32 s{sRB}, s3, 2\ns_add_u32 s{sRB}, s{sRB}, s5\ns_lshr_b32 s{sCB}, s4, 2")
    else:
        a(f"s_lshr_b32 s5, s3, 1\ns_lshl_b32 s{sRB}, s5, 3\ns_and_b32 s5, s4, 7\ns_add_u32 s{sRB}, s{sRB}, s5\ns_and_b32 s5, s3, 1\ns_lshl_b32 s{sCB}, s5, 2\ns_lshr_b32 s5, s4, 3\ns_add_u32 s{sCB}, s{sCB}, s5")
    a(f"""
    v_lshrrev_b32 v{g}, 4, v{l}
    v_and_b32 v{c16}, 15, v{l}
    v_lshlrev_b32 v{vL16}, 4, v{l}
    s_lshl_b32 s{sLB}, s{sWV}, 15
    """)
    for s in range(4):
        a(f"""
        s_add_u32 s3, s{sWV}, {s}
        s_and_b32 s3, s3, 3
        s_lshl_b32 s4, s3, 17
        s_lshl_b32 s3, s3, 10
        v_add_u32 v{vBA + s}, s4, v{vL16}
        v_add_u32 v{vHA + s}, s3, v{vL16}
        """)
    a(f"""
    s_lshl_b32 s{sOB}, s{sRB}, 19
    s_lshl_b32 s3, s{sWV}, 15
    s_add_u32 s{sOB}, s{sOB}, s3
    s_mul_i32 s{sHB}, s{sWV}, {11 * 131072}
    s_lshl_b32 s3, s{sRB}, 12
    s_add_u32 s{sHB}, s{sHB}, s3
    s_lshl_b32 s{sWOB}, s{sWV}, 20
    s_mul_i32 s{sW2B}, s{sWV}, {11 * 32768}
    """)
    a(f"""
    v_lshrrev_b32 v{t0}, 3, v{l}
    v_lshlrev_b32 v{t0}, 10, v{t0}
    v_and_b32 v{t1}, 7, v{l}
    v_lshlrev_b32 v{t2}, 1, v{g}
    v_xor_b32 v{t1}, v{t1}, v{t2}
    v_lshl_add_u32 v{vWD}, v{t1}, 4, v{t0}
    v_add_u32 v{vWD + 1}, {1 * (8192 - 1024)}, v{vWD}
    v_add_u32 v{vWD + 2}, {2 * (8192 - 1024)}, v{vWD}
    v_add_u32 v{vWD + 3}, {3 * (8192 - 1024)}, v{vWD}
    s_waitcnt lgkmcnt(0)
    s_lshl_b32 s3, s{sCB}, 7
    """)
    srd(a, sO, 60, 61, WS_O_BYTES, off=WS_O)
    srd(a, sH, 60, 61, WS_H_BYTES, off=WS_H)
    srd(a, sWO, 50, 51, 0, off="s3")
    a(f"s_sub_u32 s{sWO + 2}, 4194304, s3")
    srd(a, sW2, 52, 53, 0, off="s3")
    a(f"s_sub_u32 s{sW2 + 2}, {1376 * 1024}, s3")
    units = [("h", i) for i in range(11)] + [("o", i) for i in range(32)]
    if not cfg.ffn_first: units = units[11:] + units[:11]
    NU = len(units)
    def loads(u):
        kind, i = units[u]; slot = u % NS
        ops = []
        if kind == "o":
            ops.append([f"s_add_u32 m0, s{sLB}, {slot * 4096}", f"s_add_u32 s{sS1}, s{sWOB}, {i * 32768}", f"s_add_u32 s{sS2}, s{sOB}, {i * 1024}"])
            wsrd, bsrd, ba = sWO, sO, vBA
        else:
            ops.append([f"s_add_u32 m0, s{sLB}, {slot * 4096}", f"s_add_u32 s{sS1}, s{sW2B}, {i * 32768}", f"s_add_u32 s{sS2}, s{sHB}, {i * 131072}"])
            wsrd, bsrd, ba = sW2, sH, vHA
        for j in range(4):
            ops.append(("vm", f"w{u}", f"buffer_load_dwordx4 v{vWD + j}, {sr(wsrd, 4)}, s{sS1} offen offset:{j * 1024}{cfg.ldf} lds"))
        for j in range(4):
            ops.append(("vm", f"b{u}", f"buffer_load_dwordx4 {ar(aB + slot * 16 + j * 4, 4)}, v{ba + j}, {sr(bsrd, 4)}, s{sS2} offen{cfg.ldf}"))
        return ops
    def flat(ops):
        out = []
        for o in ops:
            if isinstance(o, list): out += o
            else: out.append(o)
        return out
    def areads(u):
        slot = u % NS
        return [("rd", f"a{u}", f"ds_read_b64_tr_b16 {ar(aA + (u & 1) * 16 + T * 4 + 2 * e, 2)}, v{vWA + T} offset:{slot * 4096 + e * 2048}") for T in range(4) for e in range(2)]
    D = cfg.depth
    em.emit(flat(loads(0)))
    if cfg.warm:
        a(f"""
        s_getpc_b64 s[4:5]
        L2_pc:
        s_sub_u32 s4, s4, L2_pc-{name}
        s_subb_u32 s5, s5, 0
        v_lshlrev_b32 v48, 7, v0
        v_mov_b32 v51, s5
        v_min_u32 v48, L2_end-{name}, v48
        v_add_co_u32 v50, vcc, s4, v48
        s_nop 1
        v_addc_co_u32 v51, vcc, 0, v51, vcc
        global_load_dword v52, v[50:51], off
        """)
        em.vm.append("warm")
    for u in range(1, D - 1): em.emit(flat(loads(u)))
    a(f"""
    v_lshrrev_b32 v{t0}, 2, v{c16}
    v_lshl_add_u32 v{t0}, v{g}, 2, v{t0}
    v_and_b32 v{t2}, 3, v{c16}
    v_lshlrev_b32 v{t2}, 3, v{t2}
    v_lshl_add_u32 v{t1}, v{t0}, 7, v{t2}
    v_add_u32 v{t1}, s{sLB}, v{t1}
    v_bfe_u32 v{t3}, v{t0}, 1, 2
    """)
    for T in range(4):
        a(f"v_xor_b32 v{vWA + T}, {T}, v{t3}\nv_lshl_add_u32 v{vWA + T}, v{vWA + T}, 5, v{t1}")
    srd(a, sX, 48, 49, 2097152)
    srd(a, sB2, 54, 55, 1024)
    srd(a, sOUT, 56, 57, 2097152)
    a(f"""
    s_lshl_b32 s3, s{sRB}, 16
    s_lshl_b32 s4, s{sWV}, 14
    s_add_u32 s3, s3, s4
    s_lshl_b32 s4, s{sCB}, 7
    v_lshl_add_u32 v{vXA + 1}, v{g}, 3, s4
    v_lshl_add_u32 v{vXA}, v{c16}, 10, v{vXA + 1}
    v_add_u32 v{vXA}, s3, v{vXA}
    """)
    if cfg.stamps: a("v_mov_b32 v63, s94")
    stamp(a, cfg)
    em.emit([("wv", "w0")] + areads(0))
    extra = [("vm", "x", f"buffer_load_dwordx2 {vr(vX + 2 * T, 2)}, v{vXA}, {sr(sX, 4)}, 0 offen offset:{T * 32}") for T in range(4)]
    extra += [("vm", "x", f"buffer_load_dwordx2 {vr(vB2 + 2 * T, 2)}, v{vXA + 1}, {sr(sB2, 4)}, 0 offen offset:{T * 32}") for T in range(4)]
    seen = set()
    for u in range(NU):
        kind, i = units[u]; slot = u % NS
        accb = vSA if kind == "o" else vFA
        mf = []
        for T in range(4):
            for q in range(4):
                qb = q if T % 2 == 0 else 3 - q
                d = vr(accb + (T * 4 + qb) * 4, 4)
                mf.append(f"{MF} {d}, {ar(aA + (u & 1) * 16 + T * 4, 4)}, {ar(aB + slot * 16 + qb * 4, 4)}, {d if kind in seen else '0'}")
        seen.add(kind)
        pre = []
        nl = u + D - 1
        sc = Sched(mf)
        if u + 1 < NU:
            pre.append(("wv", f"w{u + 1}"))
        else:
            pre.append(("wv", f"b{u}"))
        pre.append(("wl", f"a{u}"))
        ld = loads(nl) if nl < NU else ([extra.pop(0) for _ in range(len(extra))] if extra else [])
        p = 0
        if u + 1 < NU:
            for k, r in enumerate(areads(u + 1)): sc.put(2 * k, r, mem=True)
        for o in ld:
            if isinstance(o, list): pre += o
            else:
                sc.put(p * 2 + 1, o, cost=2, mem=True); p += 1
        em.emit(pre + sc.seq())
    stamp(a, cfg)
    a("s_nop 7\ns_barrier")
    for s in range(1, 4):
        a(f"""
        s_add_u32 s3, s{sWV}, {s}
        s_and_b32 s3, s3, 3
        s_mul_i32 s3, s3, {24 * 1024}
        s_add_u32 s3, s3, {(s - 1) * 8192}
        v_add_u32 v{36 + s}, s3, v{vL16}
        """)
        em.emit([("rd", "rw", f"ds_write_b128 v{36 + s}, {vr(b + (T * 4 + s) * 4, 4)} offset:{(k * 4 + T) * 1024}") for k, b in enumerate((vSA, vFA)) for T in range(4)])
    a(f"s_mul_i32 s3, s{sWV}, {24 * 1024}\nv_add_u32 v36, s3, v{vL16}")
    em.emit([("wl", "rw"), "s_barrier"])
    for k, b in ((1, vFA), (0, vSA)):
        for s in range(1, 4):
            em.emit([("rd", f"r{k}{s}", f"ds_read_b128 {vr(b + (T * 4 + s) * 4, 4)}, v36 offset:{(s - 1) * 8192 + (k * 4 + T) * 1024}") for T in range(4)])
        if k == 1:
            em.emit([("wv", "x")])
            for T in range(4):
                for hf in range(2):
                    r = vB2 + 2 * T + hf; d = vFA + T * 16 + 2 * hf
                    a(f"v_lshlrev_b32 v40, 16, v{r}\nv_and_b32 v41, 0xffff0000, v{r}\nv_pk_add_f32 {vr(d, 2)}, {vr(d, 2)}, v[40:41]")
            for s in range(1, 4):
                em.emit([("wl", f"r{k}{s}")])
                for T in range(4):
                    for hf in range(2):
                        d = vr(b + T * 16 + 2 * hf, 2)
                        a(f"v_pk_add_f32 {d}, {d}, {vr(b + (T * 4 + s) * 4 + 2 * hf, 2)}")
    for T in range(4):
        for r in range(4): a(f"v_mul_f32 v{vFA + T * 16 + 4 + r}, {f32hex(-1.4426950408889634)}, v{vFA + T * 16 + r}")
    for T in range(4):
        for r in range(4): a(f"v_exp_f32 v{vFA + T * 16 + 4 + r}, v{vFA + T * 16 + 4 + r}")
    for T in range(4):
        for hf in range(2):
            d = vr(vFA + T * 16 + 4 + 2 * hf, 2); a(f"v_pk_add_f32 {d}, {d}, 1.0 op_sel_hi:[1,0]")
    for T in range(4):
        for r in range(4): a(f"v_rcp_f32 v{vFA + T * 16 + 4 + r}, v{vFA + T * 16 + 4 + r}")
    for T in range(4):
        for hf in range(2):
            d = vr(vFA + T * 16 + 2 * hf, 2); a(f"v_pk_mul_f32 {d}, {d}, {vr(vFA + T * 16 + 4 + 2 * hf, 2)}")
    for s in range(1, 4):
        em.emit([("wl", f"r0{s}")])
        for T in range(4):
            for hf in range(2):
                d = vr(vSA + T * 16 + 2 * hf, 2)
                a(f"v_pk_add_f32 {d}, {d}, {vr(vSA + (T * 4 + s) * 4 + 2 * hf, 2)}")
    for T in range(4):
        for hf in range(2):
            r = vX + 2 * T + hf; d = vSA + T * 16 + 2 * hf
            a(f"v_lshlrev_b32 v40, 16, v{r}\nv_and_b32 v41, 0xffff0000, v{r}")
            a(f"v_pk_fma_f32 {vr(d, 2)}, {vr(d, 2)}, {vr(vFA + T * 16 + 2 * hf, 2)}, v[40:41]")
            a(f"v_cvt_pk_bf16_f32 v{r}, v{d}, v{d + 1}")
        em.emit([("vm", "st", f"buffer_store_dwordx2 {vr(vX + 2 * T, 2)}, v{vXA}, {sr(sOUT, 4)}, 0 offen offset:{T * 32}")])
    if cfg.stamps:
        stamp(a, cfg)
        a("s_waitcnt vmcnt(0)")
        stamp(a, cfg)
        a("s_memrealtime s[90:91]\ns_waitcnt lgkmcnt(0)\ns_sub_u32 s90, s90, s96\nv_mov_b32 v62, s92\nv_cmp_eq_u32 vcc, v62, v1\nv_mov_b32 v62, s90\ns_nop 0\nv_cndmask_b32 v63, v63, v62, vcc")
        srd(a, 4, 60, 61, 1 << 20, off=WS_ST + (1 << 20))
        a("s_lshl_b32 s3, s2, 10\nv_lshl_add_u32 v62, v0, 2, s3\nbuffer_store_dword v63, v62, s[4:7], 0 offen")
    a("L2_end:\ns_endpgm")
    fix_hazards(a)
    for e in check_trace(a.ins, "k2")[:30]: print("ERR", e)
    return a
```

```python
import sys
from common import *
import k1
def make(path, c1, with_k2=True, c2=None):
    n1 = "attn_kernel"
    parts = [(n1, k1.build(c1, n1), k1.LDS_BYTES, 512, 256)]
    if with_k2:
        import k2
        n2 = "outp_kernel"
        parts.append((n2, k2.build(c2 or k2.Cfg(), n2), k2.LDS_BYTES, 512, 256))
    hdr = open("cdna_kernels/" + KN + ".s.ref").read().split("\n")
    hdr = [l for l in hdr if l.startswith(";") and "@launch" not in l and "Override launch" not in l and "grid=ceil" not in l]
    s = "\n".join(hdr) + "\n"
    for n, _, lds, _, _ in parts:
        s += f"; @launch kernel={n} grid=(256,1,1) block=(256,1,1) lds={lds}\n"
    s += '.amdgcn_target "amdgcn-amd-amdhsa--gfx950"\n.text\n'
    for n, a, _, _, _ in parts:
        s += f".globl {n}\n.p2align 8\n.type {n},@function\n{n}:\n{a.text()}"
    s += '.section .rodata,"a"\n'
    for n, _, _, vg, ac in parts:
        s += ".p2align 6\n" + descriptor(n, vg, ac)
    open(path, "w").write(s)
def cfgs(k1kw={}, k2kw={}):
    import k2
    c = k1.Cfg(); d = k2.Cfg()
    for k, v in k1kw.items(): setattr(c, k, v)
    for k, v in k2kw.items(): setattr(d, k, v)
    return c, d
if __name__ == "__main__":
    names = []
    def var(n, k1kw={}, k2kw={}):
        c, d = cfgs(k1kw, k2kw); make(n, c, True, d); names.append(n)
    var("v_base.s")
    var("v_st.s", dict(stamps=True), dict(stamps=True))
    var("v_B_st.s", dict(stamps=True), dict(stamps=True, mapping="B"))
    print(" ".join(names))
```

```python
import sys
from common import *
base = sys.argv[1]
s = open(base).read()
import re
LL = re.findall(r"; @launch kernel=.*\n", s)
def mk(name, pre, body, grid=256, post=False):
    L0 = f"; @launch kernel={pre} grid=({grid},1,1) block=(256,1,1) lds=0\n"
    t = s.replace("".join(LL), (L0 + "".join(LL)) if not post else ("".join(LL) + L0))
    t = t.replace('.section .rodata,"a"\n', f'.globl {pre}\n.p2align 8\n.type {pre},@function\n{pre}:\n{body}    s_endpgm\n.section .rodata,"a"\n.p2align 6\n' + descriptor(pre, 64, 64, 102))
    open(name, "w").write(t)
busy = """    s_mov_b32 s4, 3000
    v_mov_b32 v1, 1.0
LB:
    v_fma_f32 v1, v1, v1, v1
    v_fma_f32 v1, v1, v1, v1
    v_fma_f32 v1, v1, v1, v1
    v_fma_f32 v1, v1, v1, v1
    s_sub_u32 s4, s4, 1
    s_cmp_lg_u32 s4, 0
    s_cbranch_scc1 LB
"""
mk("y_B12.s", "busy_kernel", busy)
mk("y_12B.s", "busy_kernel", busy, post=True)
bufs = [(0, 2097152), (8, 16777216), (16, 16777216), (24, 4194304), (32, 4194304), (48, 1409024), (64, 1409024), (80, 2097152), (96, 24 << 20)]
a = Asm()
a("v_lshlrev_b32 v1, 16, v0\nv_add_u32 v2, 0x1000000, v1")
for off, n in bufs:
    a(f"s_load_dwordx2 s[4:5], s[0:1], {off}\ns_waitcnt lgkmcnt(0)")
    srd(a, 8, 4, 5, n)
    a("buffer_load_dword v3, v1, s[8:11], 0 offen")
    if n > (16 << 20): a("buffer_load_dword v4, v2, s[8:11], 0 offen")
a("s_waitcnt vmcnt(0)")
mk("y_T12.s", "touch_kernel", a.text())
a = Asm()
a("s_lshl_b32 s3, s2, 12\nv_lshl_add_u32 v1, v0, 4, s3")
k = 0
for off, n in bufs[:7]:
    a(f"s_load_dwordx2 s[4:5], s[0:1], {off}\ns_waitcnt lgkmcnt(0)")
    srd(a, 8, 4, 5, n)
    for i in range(-(-n // (1 << 20))):
        a(f"s_mov_b32 s6, {i << 20}\nbuffer_load_dwordx4 v[{4 + 4 * (k % 8)}:{7 + 4 * (k % 8)}], v1, s[8:11], s6 offen"); k += 1
a("s_waitcnt vmcnt(0)")
mk("y_P12.s", "pref_kernel", a.text())
mk("y_12P.s", "pref_kernel", a.text(), post=True)
```

```python
import sys, re
from common import *
base = sys.argv[1]
s = open(base).read()
n = KN + "_kernel"
L = re.findall(r"; @launch .*\n", s)[0]
LF = L.replace("@launch ", f"@launch kernel={n} ")
s = "\n".join(l for l in s.split("\n") if "Override launch" not in l and "grid=ceil" not in l)
def mk(name, seq, pre=None, body=None):
    t = s.replace(L, "".join(seq))
    if pre:
        t = t.replace('.section .rodata,"a"\n', f'.globl {pre}\n.p2align 8\n.type {pre},@function\n{pre}:\n{body}    s_endpgm\n.section .rodata,"a"\n.p2align 6\n' + descriptor(pre, 64, 64, 102))
    open(name, "w").write(t)
def pref(bufs):
    a = Asm()
    a("s_lshl_b32 s3, s2, 12\nv_lshl_add_u32 v1, v0, 4, s3")
    k = 0
    for i, (off, nb) in enumerate(bufs):
        a(f"s_load_dwordx2 s[{40 + 2 * i}:{41 + 2 * i}], s[0:1], {off}")
    a("s_waitcnt lgkmcnt(0)")
    for i, (off, nb) in enumerate(bufs):
        srd(a, 8, 40 + 2 * i, 41 + 2 * i, nb)
        for j in range(-(-nb // (1 << 20))):
            a(f"s_mov_b32 s6, {j << 20}\nbuffer_load_dwordx4 v[{4 + 4 * (k % 8)}:{7 + 4 * (k % 8)}], v1, s[8:11], s6 offen"); k += 1
    a("s_waitcnt vmcnt(0)")
    return a.text()
LP = "; @launch kernel=pref_kernel grid=(256,1,1) block=(256,1,1) lds=0\n"
mk("full_z1.s", [LF])
mk("full_z2.s", [LF, LF])
mk("full_zin.s", [LP, LF], "pref_kernel", pref([(0, 2097152), (24, 4194304), (48, 1409024)]))
mk("full_zkv.s", [LP, LF], "pref_kernel", pref([(8, 16777216), (16, 16777216)]))
mk("full_zw.s", [LP, LF], "pref_kernel", pref([(32, 4194304), (64, 1409024)]))
mk("full_zws.s", [LP, LF], "pref_kernel", pref([(96, 22 << 20), (80, 2097152)]))
```
